```python
import torch

def _softmax(x, axis=-1):
    return torch.softmax(x, dim=axis)

def _gelu(x):
    return torch.nn.functional.gelu(x, approximate='tanh')

def _silu(x):
    return torch.nn.functional.silu(x)

def _sigmoid(x):
    return torch.sigmoid(x)

def _layernorm(x, axis=-1, eps=1e-05):
    m = x.mean(dim=axis, keepdim=True)
    v = x.var(dim=axis, keepdim=True, unbiased=False)
    return (x - m) / torch.sqrt(v + eps)

def _scatter_add(tgt, idx, src, axis=0):
    return tgt.clone().index_add_(axis, idx, src)

def _segment_sum(src, seg, n):
    out = torch.zeros((n,) + src.shape[1:], dtype=src.dtype)
    return out.index_add_(0, seg, src)

def _pad(x, pw):
    flat = tuple((v for pair in reversed(pw) for v in pair))
    return torch.nn.functional.pad(x, flat)
kernel_name = 'adaLN_cond__ssm_conv_h3__glu_gated_geglu__prompt'

def setup_inputs():

    _w = lambda a: (lambda t: t.to(torch.bfloat16) if t.is_floating_point() else t)(torch.as_tensor(a))

    def _A_setup():
        B, S, D = (1, 2048, 1024)
        ks = 4
        return {'q': _w((lambda *s: torch.randn(*s, dtype=torch.bfloat16) * 0.05)(B, S, D)), 'k': _w((lambda *s: torch.randn(*s, dtype=torch.bfloat16) * 1.6)(B, S, D)), 'v': _w((lambda *s: torch.randn(*s, dtype=torch.bfloat16) * 1.6)(B, S, D)), 'shift_k': _w((lambda *s: torch.randn(*s, dtype=torch.bfloat16) * 1.6)(D, ks) * 0.5), 'ssm_k': _w((lambda *s: torch.randn(*s, dtype=torch.bfloat16) * 1.6)(D, S) * (1.0 / S ** 0.5)), 'ssm_D': _w((lambda *s: torch.randn(*s, dtype=torch.bfloat16) * 1.6)(D))}
    _A_in = _A_setup()

    def _B_setup():
        B, S, Dm, Df = (1, 2048, 1024, 3584)
        return {'x': _w((lambda *s: torch.randn(*s, dtype=torch.bfloat16) * 0.05)(B, S, Dm)), 'w_gate': _w((lambda *s: torch.randn(*s, dtype=torch.bfloat16) * 3.2)(Dm, Df) * Dm ** (-0.5)), 'w_up': _w((lambda *s: torch.randn(*s, dtype=torch.bfloat16) * 3.2)(Dm, Df) * Dm ** (-0.5)), 'w_down': _w((lambda *s: torch.randn(*s, dtype=torch.bfloat16) * 3.2)(Df, Dm) * Df ** (-0.5))}
    _B_in = _B_setup()
    return {'A_q': _A_in['q'], 'A_k': _A_in['k'], 'A_v': _A_in['v'], 'A_shift_k': _A_in['shift_k'], 'A_ssm_k': _A_in['ssm_k'], 'A_ssm_D': _A_in['ssm_D'], 'B_x': _B_in['x'], 'B_w_gate': _B_in['w_gate'], 'B_w_up': _B_in['w_up'], 'B_w_down': _B_in['w_down'], 'c': _w((lambda *s: torch.randn(*s, dtype=torch.bfloat16) * 0.1)(1, 1024) * 8.0), 'w_mod': _w((lambda *s: torch.randn(*s, dtype=torch.bfloat16) * 0.1)(1024, 6 * 1024) * 1024 ** (-0.5) * 8.0)}

def reference(A_q, A_k, A_v, A_shift_k, A_ssm_k, A_ssm_D, B_x, B_w_gate, B_w_up, B_w_down, c, w_mod):

    def _A_ref(q, k, v, shift_k, ssm_k, ssm_D):
        B, S, D = q.shape
        ks = shift_k.shape[-1]
        k_pad = _pad(k, ((0, 0), (ks - 1, 0), (0, 0)))
        k_shift = torch.zeros_like(k)
        for t in range(ks):
            k_shift = k_shift + k_pad[:, t:t + S, :] * shift_k[:, ks - 1 - t][None, None, :]
        kv = k_shift * v
        L = 2 * S
        kv_pad = _pad(kv, ((0, 0), (0, S), (0, 0)))
        kf_pad = _pad(ssm_k, ((0, 0), (0, S)))
        kv_f = (lambda x, axes=(-2, -1): torch.fft.rfft2(x.float(), dim=axes))(kv_pad[:, None, :, :], axes=(1, 2))
        kf_f = (lambda x, axes=(-2, -1): torch.fft.rfft2(x.float(), dim=axes))(kf_pad[:, None, :], axes=(1, 2))
        kf_f = (lambda x, *d: x.permute(*d))(kf_f, 1, 2, 0)
        y_f = kv_f * kf_f[None, :, :, :]
        y = (lambda x, s, axes=(-2, -1): torch.fft.irfft2(x, s=s, dim=axes).to(torch.bfloat16))(y_f, (1, L), axes=(1, 2))[:, 0, :S, :]
        y = y + kv * ssm_D[None, None, :]
        return q * y

    def _B_ref(x, w_gate, w_up, w_down):
        g = torch.einsum('bsd,df->bsf', x, w_gate)
        u = torch.einsum('bsd,df->bsf', x, w_up)
        h = _gelu(g) * u
        return torch.einsum('bsf,fd->bsd', h, w_down)
    x = A_q
    mod = (_silu(c) @ w_mod).reshape(c.shape[0], 6, 1, -1)
    sa, ca, ga, sb, cb, gb = (mod[:, 0].clone(), mod[:, 1].clone(), mod[:, 2].clone(), mod[:, 3].clone(), mod[:, 4].clone(), mod[:, 5].clone())
    h = _layernorm(x, axis=-1) * (1 + ca) + sa
    x = x + ga * _A_ref(h, A_k, A_v, A_shift_k, A_ssm_k, A_ssm_D)
    h = _layernorm(x, axis=-1) * (1 + cb) + sb
    x = x + gb * _B_ref(h, B_w_gate, B_w_up, B_w_down)
    return x
```

```python
import re

TRANS = ("v_exp_f32", "v_log_f32", "v_rcp_f32", "v_rsq_f32", "v_sqrt_f32", "v_sin_f32", "v_cos_f32",
         "v_rcp_iflag_f32", "v_exp_f16", "v_rcp_f16")
RMW = ("v_fmac_f32", "v_dot2c_f32_bf16", "v_pk_fmac_f16", "v_fmac_f64", "v_mac_f32")

def v(i, n=1):
    return f"v{i}" if n == 1 else f"v[{i}:{i+n-1}]"
def a(i, n=1):
    return f"a{i}" if n == 1 else f"a[{i}:{i+n-1}]"
def s(i, n=1):
    return f"s{i}" if n == 1 else f"s[{i}:{i+n-1}]"

_tok = re.compile(r"^(-|\|)?(abs\()?([vas])(\d+|\[(\d+):(\d+)\])\)?\|?$")
def regs_of(tok):
    tok = tok.strip()
    if tok in ("vcc",): return [("s", "vcc_lo"), ("s", "vcc_hi")]
    if tok in ("vcc_lo", "vcc_hi", "m0", "exec_lo", "exec_hi"): return [("s", tok)]
    if tok == "exec": return [("s", "exec_lo"), ("s", "exec_hi")]
    m = _tok.match(tok)
    if not m: return []
    k = m.group(3)
    if m.group(5) is not None:
        return [(k, i) for i in range(int(m.group(5)), int(m.group(6)) + 1)]
    return [(k, int(m.group(4)))]

class Ins:
    __slots__ = ("text", "op", "cls", "dst", "src", "passes", "srcA", "srcB", "srcC", "dpp", "trans",
                 "store_data", "lds_dma", "sdwa", "nstates", "sgpr_src_vmem", "lanesel", "permlane", "readlane")
    def __init__(self, text):
        self.text = text
        t = text.split(";")[0].strip()
        parts = t.split(None, 1)
        op = parts[0]
        self.op = op
        rest = parts[1] if len(parts) > 1 else ""
        ops, cur, depth = [], "", 0
        for ch in rest:
            if ch == "[": depth += 1
            if ch == "]": depth -= 1
            if ch == "," and depth == 0:
                ops.append(cur.strip()); cur = ""
            else:
                cur += ch
        if cur.strip(): ops.append(cur.strip())
        mods = ""
        if ops:
            last = ops[-1].split(None, 1)
            ops[-1] = last[0]
            mods = last[1] if len(last) > 1 else ""
        self.dst, self.src = [], []
        self.passes = 0; self.srcA = self.srcB = self.srcC = []
        self.dpp = False; self.trans = False; self.store_data = []; self.lds_dma = False
        self.sdwa = False; self.nstates = 1; self.sgpr_src_vmem = []; self.lanesel = []
        self.permlane = False; self.readlane = False
        base = op.replace("_e32", "").replace("_e64", "").replace("_dpp", "").replace("_sdwa", "")
        R = [regs_of(o) for o in ops]
        if op == "s_nop":
            self.cls = "nop"; self.nstates = int(ops[0], 0) + 1
        elif op.startswith("v_mfma") or op.startswith("v_smfmac"):
            self.cls = "mfma"
            self.dst = R[0]; self.srcA = R[1]; self.srcB = R[2]; self.srcC = R[3] if len(R) > 3 else []
            self.src = self.srcA + self.srcB + self.srcC
            if "32x32x16" in op or "32x32x8" in op: self.passes = 8
            elif "16x16x32" in op or "16x16x16" in op: self.passes = 4
            else: raise ValueError("unknown mfma " + op)
        elif op.startswith("v_"):
            self.cls = "valu"
            self.trans = base in TRANS
            self.dpp = ("row_" in mods or "quad_perm" in mods or "wave_" in mods or "row_" in rest or "quad_perm" in rest)
            self.sdwa = ("_sdwa" in op) and ("dst_sel:DWORD" not in text) or ("op_sel:" in text and not base.startswith("v_pk_"))
            if base.startswith("v_cmp"):
                self.dst = R[0]; self.src = sum(R[1:], [])
                if base.startswith("v_cmpx"): self.dst = self.dst + regs_of("exec")
            elif base in ("v_readfirstlane_b32", "v_readlane_b32"):
                self.dst = R[0]; self.src = R[1]; self.readlane = True
                if len(R) > 2: self.lanesel = R[2]; self.src = self.src + R[2]
            elif base == "v_writelane_b32":
                self.dst = R[0]; self.src = R[0] + R[1]; self.lanesel = R[2]
            elif base in ("v_add_co_u32", "v_sub_co_u32", "v_subrev_co_u32"):
                self.dst = R[0] + R[1]; self.src = sum(R[2:], [])
            elif base in ("v_addc_co_u32", "v_subb_co_u32"):
                self.dst = R[0] + R[1]; self.src = sum(R[2:], [])
            elif base.startswith("v_permlane") and "swap" in base:
                self.dst = R[0] + R[1]; self.src = R[0] + R[1]; self.permlane = True
            elif base == "v_cndmask_b32":
                self.dst = R[0]; self.src = sum(R[1:], [])
                if len(ops) == 3: self.src = self.src + regs_of("vcc")
            else:
                self.dst = R[0]; self.src = sum(R[1:], [])
                if base in RMW: self.src = self.src + R[0]
            if self.dpp: self.src = self.src + []
        elif op.startswith("ds_"):
            self.cls = "ds"
            if op.startswith("ds_read") or op.startswith("ds_bpermute") or op.startswith("ds_swizzle") or op.startswith("ds_permute"):
                self.dst = R[0]; self.src = sum(R[1:], [])
            else:
                self.src = sum(R, [])
        elif op.startswith("buffer_") or op.startswith("global_"):
            self.cls = "vmem"
            modset = mods.split()
            if op in ("buffer_inv", "buffer_wbl2"):
                pass
            elif op.startswith("buffer_load"):
                if "lds" in modset:
                    self.lds_dma = True
                    self.src = sum(R, [])
                else:
                    self.dst = R[0]; self.src = sum(R[1:], [])
            elif op.startswith("buffer_store"):
                self.src = sum(R, [])
                if "x4" in op or "x3" in op: self.store_data = R[0]
            elif op.startswith("buffer_atomic"):
                self.src = sum(R, [])
                if "sc0" in modset: self.dst = R[0]
            elif op.startswith("global_load_lds"):
                self.lds_dma = True; self.src = sum(R, [])
            elif op.startswith("global_load"):
                self.dst = R[0]; self.src = sum(R[1:], [])
            elif op.startswith("global_store"):
                self.src = sum(R, [])
                if "x4" in op or "x3" in op: self.store_data = R[1]
            elif op.startswith("global_atomic"):
                self.src = sum(R, [])
            else:
                raise ValueError("unknown vmem " + op)
            self.sgpr_src_vmem = [r for r in self.src if r[0] == "s"]
        elif op.startswith("s_"):
            self.cls = "salu"
            nodst = op.startswith(("s_cmp", "s_waitcnt", "s_barrier", "s_branch", "s_cbranch", "s_endpgm", "s_setprio",
                                   "s_sleep", "s_bitcmp", "s_setpc", "s_sendmsg"))
            if nodst:
                self.src = sum(R, [])
            else:
                self.dst = R[0] if R else []
                self.src = sum(R[1:], [])
                if "saveexec" in op: self.dst = self.dst + regs_of("exec")
        else:
            raise ValueError("unknown instruction: " + text)

def overlap(x, y):
    if not x or not y: return False
    sx = set(x)
    return any(r in sx for r in y)

def need_states(p, c):
    n = 0
    if p.cls == "valu":
        vd = [r for r in p.dst if r[0] in "va"]
        sd = [r for r in p.dst if r[0] == "s"]
        if c.cls == "mfma" and overlap(vd, c.src): n = max(n, 2)
        if c.cls == "mfma" and any(r[1] in ("exec_lo", "exec_hi") for r in sd): n = max(n, 4)
        if c.cls == "valu":
            if p.trans and not c.trans and overlap(vd, c.src): n = max(n, 1)
            if p.trans and c.trans and overlap(vd, c.src): n = max(n, 1)
            if c.dpp and overlap(vd, c.src + c.dst): n = max(n, 2)
            if c.readlane and overlap(vd, c.src): n = max(n, 1)
            if c.permlane and overlap(vd, c.src): n = max(n, 2)
            if p.sdwa and overlap(vd, c.src + c.dst): n = max(n, 1)
            if sd and overlap(sd, c.lanesel): n = max(n, 4)
            if sd and overlap(sd, c.src): n = max(n, 2)
            if c.dpp and any(r[1] in ("exec_lo", "exec_hi") for r in sd): n = max(n, 5)
        if c.cls == "vmem" and sd and overlap(sd, c.sgpr_src_vmem): n = max(n, 5)
        if c.cls == "salu" and sd and overlap(sd, c.src): n = max(n, 2)
    if p.cls == "mfma":
        ps = p.passes
        big = {4: 8, 8: 12}[ps]
        if c.cls == "mfma":
            if overlap(p.dst, c.srcA + c.srcB): n = max(n, big)
            if overlap(p.dst, c.srcC):
                if not (p.dst == c.srcC and p.passes == c.passes): n = max(n, {4: 6, 8: 10}[ps])
            if overlap(p.dst, c.dst) and p.dst != c.dst: n = max(n, {4: 6, 8: 10}[ps])
        elif c.cls == "valu":
            if overlap(p.dst, c.src) or overlap(p.dst, c.dst): n = max(n, big)
            if overlap(p.srcC, c.dst): n = max(n, {4: 3, 8: 7}[ps])
        elif c.cls in ("ds", "vmem"):
            if overlap(p.dst, c.src) or overlap(p.dst, c.dst): n = max(n, big)
    if p.cls == "vmem" and p.store_data:
        if c.cls == "valu" and overlap(p.store_data, c.dst): n = max(n, 2)
        elif c.cls in ("ds", "vmem", "mfma") and overlap(p.store_data, c.dst): n = max(n, 1)
    if p.cls == "salu":
        if any(r[1] == "m0" for r in p.dst) and (c.lds_dma or "addtid" in c.op): n = max(n, 1)
    return n

class Asm:
    def __init__(self):
        self.lines = []
        self.hist = []
        self.nops_inserted = 0
        self.count = 0
    def raw(self, text):
        self.lines.append(text)
    def comment(self, text):
        self.lines.append("    ; " + text)
    def label(self, name):
        self.lines.append(name + ":")
    def _required(self, ins):
        need = 0; dist = 0
        for p in reversed(self.hist):
            r = need_states(p, ins)
            if r > dist: need = max(need, r - dist)
            dist += p.nstates
            if dist >= 20: break
        return need
    def i(self, text):
        ins = Ins(text)
        need = self._required(ins)
        while need > 0:
            k = min(need, 16)
            n = Ins(f"s_nop {k-1}")
            self.lines.append(f"    s_nop {k-1}")
            self.hist.append(n); need -= k; self.nops_inserted += 1
        self.lines.append("    " + text)
        self.hist.append(ins)
        if len(self.hist) > 64: self.hist = self.hist[-40:]
        self.count += 1
    def many(self, text):
        for l in text.strip().split("\n"):
            l = l.strip()
            if not l: continue
            if l.startswith(";"): self.comment(l[1:].strip())
            elif l.endswith(":"): self.label(l[:-1])
            else: self.i(l)
    def loop_check(self, start_idx):
        body = [l.strip() for l in self.lines[start_idx:] if l.strip() and not l.strip().startswith(";") and not l.strip().endswith(":")]
        inss = [Ins(l) for l in body]
        hist = list(inss)
        for k, ins in enumerate(inss[:24]):
            dist = 0
            for p in reversed(hist):
                r = need_states(p, ins)
                if r > dist:
                    raise RuntimeError(f"back-edge hazard: '{p.text}' -> '{ins.text}' needs {r}, has {dist}")
                dist += p.nstates
                if dist >= 20: break
            hist.append(ins)
    def text(self):
        return "\n".join(self.lines) + "\n"
```

```python
from asm import *

KNAME = "adaLN_cond__ssm_conv_h3__glu_gated_geglu__prompt"
KA = dict(q=0, k=8, v=16, shift=24, ssmk=32, ssmD=40, bx=48, wg=56, wu=64, wd=72, c=80, wmod=88, out=96, dbg=104, ws=112)
MB = 1 << 20
WS_KVT = 0
WS_Y2  = 4 * MB
WS_X1  = 8 * MB
WS_H2  = 12 * MB
WS_HM  = 16 * MB
WS_MOD = 32 * MB
S, D, DF = 2048, 1024, 3584

def srd(A, sbase, ptr_pair, nbytes, add=None, add_sreg=None):
    if add is None and add_sreg is None:
        A.i(f"s_mov_b32 s{sbase}, s{ptr_pair}")
        A.i(f"s_mov_b32 s{sbase+1}, s{ptr_pair+1}")
    else:
        src_lo, src_hi = f"s{ptr_pair}", f"s{ptr_pair+1}"
        if add is not None:
            A.i(f"s_add_u32 s{sbase}, {src_lo}, {add}")
            A.i(f"s_addc_u32 s{sbase+1}, {src_hi}, 0")
            src_lo, src_hi = f"s{sbase}", f"s{sbase+1}"
        if add_sreg is not None:
            A.i(f"s_add_u32 s{sbase}, {src_lo}, {add_sreg}")
            A.i(f"s_addc_u32 s{sbase+1}, {src_hi}, 0")
    A.i(f"s_mov_b32 s{sbase+2}, {nbytes}")
    A.i(f"s_mov_b32 s{sbase+3}, 0x00020000")

def kernel_begin(A, name, nwg):
    A.raw(f".globl {name}")
    A.raw(".p2align 8")
    A.raw(f".type {name},@function")
    A.raw(f"{name}:")
    A.hist = []
    A.i(f"s_cmp_ge_u32 s2, {nwg}")
    A.i(f"s_cbranch_scc1 L_{name}_end")

def kernel_end(A, name):
    A.raw(f"L_{name}_end:")
    A.i("s_endpgm")

def descriptor(name, vgpr, accum, sgpr=102):
    return f""".amdhsa_kernel {name}
  .amdhsa_next_free_vgpr {vgpr}
  .amdhsa_next_free_sgpr {sgpr}
  .amdhsa_accum_offset {accum}
  .amdhsa_group_segment_fixed_size 0
  .amdhsa_kernarg_size 120
  .amdhsa_user_sgpr_count 2
  .amdhsa_user_sgpr_kernarg_segment_ptr 1
  .amdhsa_system_sgpr_workgroup_id_x 1
  .amdhsa_float_denorm_mode_32 3
  .amdhsa_float_denorm_mode_16_64 3
.end_amdhsa_kernel
"""

def interleave(A, mfmas, fillers):
    for i, m in enumerate(mfmas):
        A.i(m)
        for f in fillers.get(i, []):
            A.i(f)

WS_DBG = 40 * MB
class Stamps:
    def __init__(self, A, on, kid):
        self.A, self.on, self.kid, self.n = A, on, kid, 0
    def stamp(self):
        if not self.on: return
        A = self.A
        r = 64 + 4 * self.n
        A.i(f"s_memtime s[{r}:{r+1}]")
        A.i(f"s_memrealtime s[{r+2}:{r+3}]")
        self.n += 1
    def dump(self, wsptr, tv, lanev, waves=3):
        if not self.on: return
        A = self.A
        A.i("s_waitcnt lgkmcnt(0)")
        A.i(f"s_add_u32 s60, s{wsptr}, {WS_DBG + self.kid*256*128}")
        A.i(f"s_addc_u32 s61, s{wsptr+1}, 0")
        A.i("s_mov_b32 s62, 0x1000000")
        A.i("s_mov_b32 s63, 0x00020000")
        A.i(f"s_lshl_b32 s59, s2, 7")
        A.i(f"v_mov_b32 v{tv+3}, s59")
        A.i(f"v_mov_b32 v{tv+2}, s{waves}")
        A.i(f"v_or_b32 v{tv+2}, v{tv+2}, v{lanev}")
        A.i(f"v_cmp_eq_u32 vcc, 0, v{tv+2}")
        A.i("s_and_saveexec_b64 s[56:57], vcc")
        A.i(f"s_cbranch_execz L_skipdump{self.kid}")
        for k in range(self.n):
            r = 64 + 4 * k
            A.i(f"v_mov_b32 v{tv}, s{r}")
            A.i(f"v_mov_b32 v{tv+1}, s{r+2}")
            A.i(f"buffer_store_dwordx2 v[{tv}:{tv+1}], v{tv+3}, s[60:63], 0 offen offset:{8*k}")
        A.i("s_waitcnt vmcnt(0)")
        A.label(f"L_skipdump{self.kid}")
        A.i("s_mov_b64 exec, s[56:57]")
```

```python
import sys, importlib
sys.path.insert(0, "gen")
from common import *

HEADER = open("cdna_kernels/" + KNAME + ".s.ref").read().split("; Override launch geometry")[0]

def build(mods, opts=None):
    A = Asm()
    infos = []
    for m in mods:
        mod = importlib.import_module(m)
        infos.append(mod.gen(A, (opts or {}).get(m)))
    hdr = HEADER
    for inf in infos:
        hdr += f"; @launch kernel={inf['name']} grid=({inf['grid']},1,1) block=({inf['block']},1,1) lds={inf['lds']}\n"
    out = hdr + '.amdgcn_target "amdgcn-amd-amdhsa--gfx950"\n.text\n' + A.text()
    out += '.section .rodata,"a"\n'
    for inf in infos:
        out += ".p2align 6\n" + descriptor(inf["name"], inf["vgpr"], inf["accum"])
    return out

if __name__ == "__main__":
    mods = sys.argv[2].split(",")
    opts = {}
    if len(sys.argv) > 3:
        import json
        opts = json.loads(sys.argv[3])
    open(sys.argv[1], "w").write(build(mods, opts))
```

```python
from asm import *

KNAME = "adaLN_cond__ssm_conv_h3__glu_gated_geglu__prompt"
KA = dict(q=0, k=8, v=16, shift=24, ssmk=32, ssmD=40, bx=48, wg=56, wu=64, wd=72, c=80, wmod=88, out=96, dbg=104, ws=112)
MB = 1 << 20
import os
WS0 = int(os.environ.get("WS0", "0")) * MB
WS_KVT = WS0
WS_Y2  = WS0 + 4 * MB
WS_X1  = WS0 + 8 * MB
WS_H2  = WS0 + 12 * MB
WS_HM  = WS0 + 16 * MB
WS_MOD = WS0 + 32 * MB
WS_XCH = WS0 + 44 * MB
WS_FLAG = WS0 + 56 * MB
S, D, DF = 2048, 1024, 3584

def srd(A, sbase, ptr_pair, nbytes, add=None, add_sreg=None):
    if add is None and add_sreg is None:
        A.i(f"s_mov_b32 s{sbase}, s{ptr_pair}")
        A.i(f"s_mov_b32 s{sbase+1}, s{ptr_pair+1}")
    else:
        src_lo, src_hi = f"s{ptr_pair}", f"s{ptr_pair+1}"
        if add is not None:
            A.i(f"s_add_u32 s{sbase}, {src_lo}, {add}")
            A.i(f"s_addc_u32 s{sbase+1}, {src_hi}, 0")
            src_lo, src_hi = f"s{sbase}", f"s{sbase+1}"
        if add_sreg is not None:
            A.i(f"s_add_u32 s{sbase}, {src_lo}, {add_sreg}")
            A.i(f"s_addc_u32 s{sbase+1}, {src_hi}, 0")
    A.i(f"s_mov_b32 s{sbase+2}, {nbytes}")
    A.i(f"s_mov_b32 s{sbase+3}, 0x00020000")

def kernel_begin(A, name, nwg):
    A.raw(f".globl {name}")
    A.raw(".p2align 8")
    A.raw(f".type {name},@function")
    A.raw(f"{name}:")
    A.hist = []
    A.i(f"s_cmp_ge_u32 s2, {nwg}")
    A.i(f"s_cbranch_scc1 L_{name}_end")

def kernel_end(A, name):
    A.raw(f"L_{name}_end:")
    A.i("s_endpgm")

def descriptor(name, vgpr, accum, sgpr=102):
    return f""".amdhsa_kernel {name}
  .amdhsa_next_free_vgpr {vgpr}
  .amdhsa_next_free_sgpr {sgpr}
  .amdhsa_accum_offset {accum}
  .amdhsa_group_segment_fixed_size 0
  .amdhsa_kernarg_size 120
  .amdhsa_user_sgpr_count 2
  .amdhsa_user_sgpr_kernarg_segment_ptr 1
  .amdhsa_system_sgpr_workgroup_id_x 1
  .amdhsa_float_denorm_mode_32 3
  .amdhsa_float_denorm_mode_16_64 3
.end_amdhsa_kernel
"""

def interleave(A, mfmas, fillers):
    for i, m in enumerate(mfmas):
        A.i(m)
        for f in fillers.get(i, []):
            A.i(f)

WS_DBG = WS0 + 40 * MB
class Stamps:
    def __init__(self, A, on, kid, base=80, rt_only=False):
        self.A, self.on, self.kid, self.n = A, on, kid, 0
        self.base, self.rt = base, rt_only
    def stamp(self):
        if not self.on: return
        A = self.A
        if self.rt:
            r = self.base + 2 * self.n
            A.i(f"s_memrealtime s[{r}:{r+1}]")
        else:
            r = self.base + 4 * self.n
            A.i(f"s_memtime s[{r}:{r+1}]")
            A.i(f"s_memrealtime s[{r+2}:{r+3}]")
        self.n += 1
    def dump(self, wsptr, tv, lanev, waves=3):
        if not self.on: return
        A = self.A
        A.i("s_waitcnt lgkmcnt(0)")
        A.i(f"s_add_u32 s60, s{wsptr}, {WS_DBG + self.kid*256*128}")
        A.i(f"s_addc_u32 s61, s{wsptr+1}, 0")
        A.i("s_mov_b32 s62, 0x1000000")
        A.i("s_mov_b32 s63, 0x00020000")
        A.i(f"s_lshl_b32 s59, s2, 7")
        A.i(f"v_mov_b32 v{tv+3}, s59")
        A.i(f"v_mov_b32 v{tv+2}, s{waves}")
        A.i(f"v_or_b32 v{tv+2}, v{tv+2}, v{lanev}")
        A.i(f"v_cmp_eq_u32 vcc, 0, v{tv+2}")
        A.i("s_and_saveexec_b64 s[56:57], vcc")
        A.i(f"s_cbranch_execz L_skipdump{self.kid}")
        for k in range(self.n):
            r = self.base + (2 if self.rt else 4) * k
            A.i(f"v_mov_b32 v{tv}, s{r}")
            A.i(f"v_mov_b32 v{tv+1}, s{r if self.rt else r+2}")
            A.i(f"buffer_store_dwordx2 v[{tv}:{tv+1}], v{tv+3}, s[60:63], 0 offen offset:{8*k}")
        A.i("s_waitcnt vmcnt(0)")
        A.label(f"L_skipdump{self.kid}")
        A.i("s_mov_b64 exec, s[56:57]")
```

```python
from asm import *

KNAME = "adaLN_cond__ssm_conv_h3__glu_gated_geglu__prompt"
KA = dict(q=0, k=8, v=16, shift=24, ssmk=32, ssmD=40, bx=48, wg=56, wu=64, wd=72, c=80, wmod=88, out=96, dbg=104, ws=112)
MB = 1 << 20
import os
WS0 = int(os.environ.get("WS0", "0")) * MB
WS_KVT = WS0
WS_Y2  = WS0 + 4 * MB
WS_X1  = WS0 + 8 * MB
WS_H2  = WS0 + 12 * MB
WS_HM  = WS0 + 16 * MB
WS_MOD = WS0 + 32 * MB
WS_XCH = WS0 + 44 * MB
WS_FLAG = WS0 + 56 * MB
S, D, DF = 2048, 1024, 3584

def srd(A, sbase, ptr_pair, nbytes, add=None, add_sreg=None):
    if add is None and add_sreg is None:
        A.i(f"s_mov_b32 s{sbase}, s{ptr_pair}")
        A.i(f"s_mov_b32 s{sbase+1}, s{ptr_pair+1}")
    else:
        src_lo, src_hi = f"s{ptr_pair}", f"s{ptr_pair+1}"
        if add is not None:
            A.i(f"s_add_u32 s{sbase}, {src_lo}, {add}")
            A.i(f"s_addc_u32 s{sbase+1}, {src_hi}, 0")
            src_lo, src_hi = f"s{sbase}", f"s{sbase+1}"
        if add_sreg is not None:
            A.i(f"s_add_u32 s{sbase}, {src_lo}, {add_sreg}")
            A.i(f"s_addc_u32 s{sbase+1}, {src_hi}, 0")
    A.i(f"s_mov_b32 s{sbase+2}, {nbytes}")
    A.i(f"s_mov_b32 s{sbase+3}, 0x00020000")

def kernel_begin(A, name, nwg):
    A.raw(f".globl {name}")
    A.raw(".p2align 8")
    A.raw(f".type {name},@function")
    A.raw(f"{name}:")
    A.hist = []
    A.i(f"s_cmp_ge_u32 s2, {nwg}")
    A.i(f"s_cbranch_scc1 L_{name}_end")

def kernel_end(A, name):
    A.raw(f"L_{name}_end:")
    A.i("s_endpgm")

def descriptor(name, vgpr, accum, sgpr=102):
    return f""".amdhsa_kernel {name}
  .amdhsa_next_free_vgpr {vgpr}
  .amdhsa_next_free_sgpr {sgpr}
  .amdhsa_accum_offset {accum}
  .amdhsa_group_segment_fixed_size 0
  .amdhsa_kernarg_size 120
  .amdhsa_user_sgpr_count 2
  .amdhsa_user_sgpr_kernarg_segment_ptr 1
  .amdhsa_system_sgpr_workgroup_id_x 1
  .amdhsa_float_denorm_mode_32 3
  .amdhsa_float_denorm_mode_16_64 3
.end_amdhsa_kernel
"""

def interleave(A, mfmas, fillers):
    for i, m in enumerate(mfmas):
        A.i(m)
        for f in fillers.get(i, []):
            A.i(f)

WS_DBG = WS0 + 40 * MB
class Stamps:
    def __init__(self, A, on, kid, base=80, rt_only=False):
        self.A, self.on, self.kid, self.n = A, on, kid, 0
        self.base, self.rt = base, rt_only
    def stamp(self):
        if not self.on: return
        A = self.A
        if self.rt:
            r = self.base + 2 * self.n
            A.i(f"s_memrealtime s[{r}:{r+1}]")
        else:
            r = self.base + 4 * self.n
            A.i(f"s_memtime s[{r}:{r+1}]")
            A.i(f"s_memrealtime s[{r+2}:{r+3}]")
        self.n += 1
    def dump(self, wsptr, tv, lanev, waves=3):
        if not self.on: return
        A = self.A
        A.i("s_waitcnt lgkmcnt(0)")
        A.i(f"s_add_u32 s60, s{wsptr}, {WS_DBG + self.kid*256*128}")
        A.i(f"s_addc_u32 s61, s{wsptr+1}, 0")
        A.i("s_mov_b32 s62, 0x1000000")
        A.i("s_mov_b32 s63, 0x00020000")
        A.i(f"s_lshl_b32 s59, s2, 7")
        A.i(f"v_mov_b32 v{tv+3}, s59")
        A.i(f"v_mov_b32 v{tv+2}, s{waves}")
        A.i(f"v_or_b32 v{tv+2}, v{tv+2}, v{lanev}")
        A.i(f"v_cmp_eq_u32 vcc, 0, v{tv+2}")
        A.i("s_and_saveexec_b64 s[56:57], vcc")
        A.i(f"s_cbranch_execz L_skipdump{self.kid}")
        for k in range(self.n):
            r = self.base + (2 if self.rt else 4) * k
            A.i(f"v_mov_b32 v{tv}, s{r}")
            A.i(f"v_mov_b32 v{tv+1}, s{r if self.rt else r+2}")
            A.i(f"buffer_store_dwordx2 v[{tv}:{tv+1}], v{tv+3}, s[60:63], 0 offen offset:{8*k}")
        A.i("s_waitcnt vmcnt(0)")
        A.label(f"L_skipdump{self.kid}")
        A.i("s_mov_b64 exec, s[56:57]")


_pf_uid = [0]
def code_prefetch(A, lab0, lab1, nbytes, sreg, voff, vdst, lanev, wave_sreg="s3", nwaves=4, wg_limit=16, as_list=False):
    _pf_uid[0] += 1
    here = f"L_cpf_{_pf_uid[0]}"
    A.i(f"s_getpc_b64 s[{sreg}:{sreg+1}]")
    A.label(here)
    A.i(f"s_sub_u32 s{sreg}, s{sreg}, {here}-{lab0}")
    A.i(f"s_subb_u32 s{sreg+1}, s{sreg+1}, 0")
    A.i(f"v_lshlrev_b32 v{voff}, 7, v{lanev}")
    A.i(f"s_lshl_b32 s{sreg+2}, {wave_sreg}, 13")
    A.i(f"v_add_u32 v{voff}, s{sreg+2}, v{voff}")
    A.i(f"s_cmp_lt_u32 s2, {wg_limit}")
    A.i(f"s_cselect_b32 s{sreg+2}, -1, 0")
    A.i(f"v_and_b32 v{voff}, s{sreg+2}, v{voff}")
    per = nwaves * 8192
    out = []
    for r in range((nbytes + per - 1) // per):
        if r: out.append(f"v_add_u32 v{voff}, {per}, v{voff}")
        out.append(f"v_min_u32 v{voff+1}, {lab1}-{lab0}-4, v{voff}")
        out.append(f"global_load_dword v{vdst}, v{voff+1}, s[{sreg}:{sreg+1}]")
    if as_list: return out
    for x in out: A.i(x)
```

```python
import sys, importlib
sys.path.insert(0, "gen")
from common import *

HEADER = open("cdna_kernels/" + KNAME + ".s.ref").read().split("; Override launch geometry")[0]

def build(mods, opts=None):
    A = Asm()
    infos = []
    for m in mods:
        mod = importlib.import_module(m)
        infos.append(mod.gen(A, (opts or {}).get(m)))
    hdr = HEADER
    single = len(infos) == 1 and (opts or {}).get("plain")
    if single:
        inf = infos[0]
        body = A.text().replace(inf["name"], KNAME + "_kernel")
        out = hdr + f"; @launch grid=({inf['grid']},1,1) block=({inf['block']},1,1) lds={inf['lds']}\n"
        out += '.amdgcn_target "amdgcn-amd-amdhsa--gfx950"\n.text\n' + body
        out += '.section .rodata,"a"\n.p2align 6\n' + descriptor(KNAME + "_kernel", inf["vgpr"], inf["accum"])
        return out
    for inf in infos:
        hdr += f"; @launch kernel={inf['name']} grid=({inf['grid']},1,1) block=({inf['block']},1,1) lds={inf['lds']}\n"
    out = hdr + '.amdgcn_target "amdgcn-amd-amdhsa--gfx950"\n.text\n' + A.text()
    out += '.section .rodata,"a"\n'
    for inf in infos:
        out += ".p2align 6\n" + descriptor(inf["name"], inf["vgpr"], inf["accum"])
    return out

if __name__ == "__main__":
    mods = sys.argv[2].split(",")
    opts = {}
    if len(sys.argv) > 3:
        import json
        opts = json.loads(sys.argv[3])
    open(sys.argv[1], "w").write(build(mods, opts))
```
